```python
import torch

def _softmax(x, axis=-1):
    return torch.softmax(x, dim=axis)
def _gelu(x):
    return torch.nn.functional.gelu(x, approximate="tanh")
def _silu(x):
    return torch.nn.functional.silu(x)
def _sigmoid(x):
    return torch.sigmoid(x)
def _layernorm(x, axis=-1, eps=1e-5):
    m = x.mean(dim=axis, keepdim=True)
    v = x.var(dim=axis, keepdim=True, unbiased=False)
    return (x - m) / torch.sqrt(v + eps)
def _scatter_add(tgt, idx, src, axis=0):
    return tgt.clone().index_add_(axis, idx, src)
def _segment_sum(src, seg, n):
    out = torch.zeros((n,) + src.shape[1:], dtype=src.dtype)
    return out.index_add_(0, seg, src)
def _pad(x, pw):
    flat = tuple(v for pair in reversed(pw) for v in pair)
    return torch.nn.functional.pad(x, flat)

kernel_name = 'standalone__mha_block_cached__near_ridge'

def setup_inputs():

    _w = (lambda a: (lambda t: t.to(torch.bfloat16) if t.is_floating_point() else t)(torch.as_tensor(a)))
    B, Sq, D = 16, 32, 640
    H, Sk, Dh = 32, 32, 192
    return {
        "x": _w((lambda *s: torch.randn(*s, dtype=torch.bfloat16) * 0.8)(B, Sq, D)),
        "k_cache": _w((lambda *s: torch.randn(*s, dtype=torch.bfloat16) * 0.8)(B, H, Sk, Dh)),
        "v_cache": _w((lambda *s: torch.randn(*s, dtype=torch.bfloat16) * 0.05)(B, H, Sk, Dh)),
        "wq": _w((lambda *s: torch.randn(*s, dtype=torch.bfloat16) * 0.8)(D, H * Dh) * (D ** -0.5)),
        "wo": _w((lambda *s: torch.randn(*s, dtype=torch.bfloat16) * 0.05)(H * Dh, D) * ((H * Dh) ** -0.5)),
    }

def reference(x, k_cache, v_cache, wq, wo):
    B, Sq, D = x.shape
    H, Dh = 32, 192
    q = (lambda x, *d: x.permute(*d))((x @ wq).reshape(B, Sq, H, Dh), 0, 2, 1, 3)
    scores = torch.einsum("bhqd,bhkd->bhqk", q, k_cache) * (Dh ** -0.5)
    p = _softmax(scores, axis=-1)
    o = torch.einsum("bhqk,bhkd->bhqd", p, v_cache)
    return (lambda x, *d: x.permute(*d))(o, 0, 2, 1, 3).reshape(B, Sq, H * Dh) @ wo
```

```python
KNAME = "standalone__mha_block_cached__near_ridge_kernel"
HEADER = """; Kernarg layout for this problem (64 bytes, ptrs only, base s[0:1]):
"""
class Asm:
    def __init__(self):
        self.lines = []
        self.nlabel = 0
    def __call__(self, s):
        for l in s.strip("\n").split("\n"):
            self.lines.append("    " + l.strip() if not l.strip().endswith(":") else l.strip())
    def c(self, s):
        self.lines.append("    ; " + s)
    def label(self, base="L"):
        self.nlabel += 1
        return f"{base}_{self.nlabel}"
    def text(self):
        return "\n".join(self.lines) + "\n"

def kernel_begin(name):
    return f""".globl {name}
.p2align 8
.type {name},@function
{name}:
"""
def kernel_desc(name, vgpr, sgpr=102, accum=None):
    if accum is None:
        accum = min(256, (vgpr + 3) // 4 * 4)
    return f""".amdhsa_kernel {name}
  .amdhsa_next_free_vgpr {vgpr}
  .amdhsa_next_free_sgpr {sgpr}
  .amdhsa_accum_offset {accum}
  .amdhsa_group_segment_fixed_size 0
  .amdhsa_kernarg_size 64
  .amdhsa_user_sgpr_count 2
  .amdhsa_user_sgpr_kernarg_segment_ptr 1
  .amdhsa_system_sgpr_workgroup_id_x 1
.end_amdhsa_kernel
"""
def whole_file(launch_lines, kernels):
    s = HEADER
    for l in launch_lines:
        s += l + "\n"
    s += '.amdgcn_target "amdgcn-amd-amdhsa--gfx950"\n.text\n'
    for name, body, vgpr, sgpr, accum in kernels:
        s += kernel_begin(name) + body
    s += '.section .rodata,"a"\n'
    for name, body, vgpr, sgpr, accum in kernels:
        s += ".p2align 6\n" + kernel_desc(name, vgpr, sgpr, accum)
    return s
```

```python
import sys
from asmlib import *

OBUF = 0
F1 = 8 << 20
F2 = 9 << 20
PBUF = 16 << 20
WS_REC = 32 << 20
STAMP_OFF = 200 << 20

class G(Asm):
    def __init__(self):
        super().__init__()
        self.vm = []
        self.lg = []
    def vmem(self, s, tag):
        self(s); self.vm.append(tag)
    def ds(self, s, tag):
        self(s); self.lg.append(tag)
    def _cnt(self, q, tag):
        idx = max(i for i, t in enumerate(q) if t == tag)
        return len(q) - 1 - idx
    def wait_vm(self, tag):
        n = self._cnt(self.vm, tag)
        assert n <= 63, n
        self(f"s_waitcnt vmcnt({n})")
    def wait_lg(self, tag):
        n = min(self._cnt(self.lg, tag), 15)
        self(f"s_waitcnt lgkmcnt({n})")

def gen(stamps=False, rot=True, spin_max=1 << 20):
    a = G()
    nst = [0]
    def stamp():
        if stamps:
            a(f"s_memrealtime s[{80+2*nst[0]}:{81+2*nst[0]}]"); nst[0] += 1
    a("s_cmp_ge_u32 s2, 256\ns_cbranch_scc1 L_end")
    a("s_load_dwordx16 s[4:19], s[0:1], 0")
    stamp()
    a("s_memrealtime s[72:73]")
    a("v_lshrrev_b32 v1, 6, v0\nv_mov_b32 v47, v0\nv_and_b32 v0, 63, v0\nv_readfirstlane_b32 s3, v1")
    a("s_and_b32 s23, s2, 7\ns_lshr_b32 s22, s2, 3\ns_and_b32 s22, s22, 3\ns_lshr_b32 s21, s2, 5\ns_lshl_b32 s20, s23, 2\ns_add_u32 s20, s20, s22")
    a("s_movk_i32 s74, 0x3000\ns_movk_i32 s75, 0x180")
    for t in range(3):
        a(f"v_add_u32 v5, {t*64}, v0")
        a("v_mul_u32_u24 v6, 0xAAAB, v5\nv_lshrrev_b32 v6, 20, v6")
        a("v_mul_u32_u24 v7, 24, v6\nv_sub_u32 v7, v5, v7")
        a("v_and_b32 v8, 2, v6\nv_lshlrev_b32 v8, 1, v8\nv_xor_b32 v7, v7, v8\nv_lshlrev_b32 v7, 4, v7")
        if t: a(f"v_subrev_u32 v7, {t*1024}, v7")
        a(f"v_mad_u32_u24 v{10+t}, v6, s74, v7\nv_mad_u32_u24 v{20+t}, v6, s75, v7")
    a("s_movk_i32 s74, 1280")
    a("v_lshrrev_b32 v5, 3, v0\nv_and_b32 v6, 7, v0\nv_lshrrev_b32 v7, 4, v0\nv_xor_b32 v6, v6, v7\nv_lshlrev_b32 v6, 4, v6")
    a("v_mad_u32_u24 v13, v5, s74, v6\nv_xor_b32 v6, 64, v6\nv_mad_u32_u24 v14, v5, s74, v6")
    a(f"v_add_u32 v14, {8*1280-1024}, v14")
    if rot: a("s_mul_i32 s56, s21, 10\ns_lshr_b32 s56, s56, 3")
    else: a("s_mov_b32 s56, 0")
    a("s_mul_i32 s57, s3, 16*12288\ns_mul_i32 s74, s20, 384\ns_add_u32 s57, s57, s74")
    a("s_lshl_b32 s58, s21, 6\ns_lshl_b32 s74, s3, 4\ns_add_u32 s58, s58, s74\ns_mul_i32 s58, s58, 1280")
    a("s_mul_i32 s59, s3, 6144\ns_lshl_b32 s60, s3, 11\ns_add_u32 s60, s60, 24576\ns_mul_i32 s70, s3, 5120")
    a("s_and_b32 s76, s3, 1\ns_lshr_b32 s77, s3, 1")
    for d in (27, 31, 35, 39, 43, 47, 51, 55): a(f"s_mov_b32 s{d}, 0x20000")
    for d, n in ((26, 655360), (30, 6291456), (34, 6291456), (38, 7864320), (42, 7864320), (46, 655360), (50, 256), (54, WS_REC)):
        a(f"s_mov_b32 s{d}, {n}")
    a("s_waitcnt lgkmcnt(0)")
    for d, p in ((36, 10), (24, 4), (28, 6), (32, 8), (40, 12), (44, 14), (48, 16), (52, 18)):
        a(f"s_mov_b64 s[{d}:{d+1}], s[{p}:{p+1}]")
    def slot_base(s): return 32768 + ((s + 2) % 4) * 32768
    def issue_stage(s):
        sb = slot_base(s)
        a("s_mul_i32 s61, s56, 64*12288\ns_add_u32 s61, s61, s57\ns_add_u32 s62, s61, 8*12288")
        a(f"s_add_u32 m0, s59, {sb}")
        a("s_lshl_b32 s63, s56, 7\ns_add_u32 s63, s63, s58")
        for t in range(3):
            a.vmem(f"buffer_load_dwordx4 v{10+t}, s[36:39], s61 offen offset:{t*1024} lds", f"st{s}")
        a(f"s_add_u32 m0, s59, {sb+3072}")
        a("s_add_u32 s56, s56, 1")
        for t in range(3):
            a.vmem(f"buffer_load_dwordx4 v{10+t}, s[36:39], s62 offen offset:{t*1024} lds", f"st{s}")
        a(f"s_add_u32 m0, s60, {sb}")
        a("s_cmp_eq_u32 s56, 10\ns_cselect_b32 s56, 0, s56")
        for p in range(2):
            a.vmem(f"buffer_load_dwordx4 v{13+p}, s[24:27], s63 offen offset:{p*1024} lds", f"st{s}")
    issue_stage(0)
    a("s_or_b32 s74, s2, s3\ns_cmp_lg_u32 s74, 0\ns_cbranch_scc1 L_notleader")
    a("s_or_b32 s72, s72, 1\nv_mov_b32 v2, s72\nv_mov_b32 v3, s73\nv_mov_b32 v1, 0\ns_mov_b64 exec, 1\nbuffer_store_dwordx2 v[2:3], v1, s[48:51], 0 offen sc1\ns_mov_b64 exec, -1")
    a("L_notleader:")
    for s in range(1, 4): issue_stage(s)
    a("v_and_b32 v5, 0x13, v0\nv_and_b32 v6, 4, v0\nv_lshl_or_b32 v5, v6, 1, v5\nv_and_b32 v6, 8, v0\nv_lshrrev_b32 v6, 1, v6\nv_or_b32 v5, v5, v6")
    a("v_lshrrev_b32 v6, 5, v0\nv_lshlrev_b32 v6, 4, v6\nv_mad_u32_u24 v5, v5, s75, v6")
    a("s_lshl_b32 s61, s21, 1\ns_add_u32 s62, s61, s76\ns_lshl_b32 s62, s62, 5\ns_add_u32 s62, s62, s20\ns_mul_i32 s62, s62, 12288\ns_mul_i32 s63, s77, 192\ns_add_u32 s62, s62, s63")
    for st in range(6):
        a.vmem(f"buffer_load_dwordx4 a[{st*4}:{st*4+3}], v5, s[28:31], s62 offen offset:{st*32}", "K")
    a("s_add_u32 s62, s61, s77\ns_lshl_b32 s62, s62, 5\ns_add_u32 s62, s62, s20\ns_mul_i32 s62, s62, 12288\ns_mul_i32 s63, s76, 6144\ns_add_u32 s62, s62, s63\ns_add_u32 s63, s62, 3072")
    a("s_mov_b32 m0, s59\ns_nop 0")
    for t in range(3): a.vmem(f"buffer_load_dwordx4 v{20+t}, s[32:35], s62 offen offset:{t*1024} lds", "V")
    a("s_add_u32 m0, s59, 3072\ns_nop 0")
    for t in range(3): a.vmem(f"buffer_load_dwordx4 v{20+t}, s[32:35], s63 offen offset:{t*1024} lds", "V")
    a("s_movk_i32 s74, 1280")
    for c in range(5):
        a(f"v_add_u32 v5, {c*64}, v0")
        a("v_mul_u32_u24 v6, 0xCCCD, v5\nv_lshrrev_b32 v6, 20, v6\nv_mul_u32_u24 v7, 20, v6\nv_sub_u32 v7, v5, v7\nv_lshlrev_b32 v7, 4, v7")
        if c % 4: a(f"v_subrev_u32 v7, {(c%4)*1024}, v7")
        a(f"v_mad_u32_u24 v{15+c}, v6, s74, v7")
    a("v_bfe_u32 v5, v0, 2, 2\nv_lshrrev_b32 v6, 5, v0\nv_lshl_add_u32 v1, v6, 3, v5\nv_lshrrev_b32 v2, 1, v5\nv_bfe_u32 v3, v0, 4, 1")
    a("v_and_b32 v5, 1, v0\nv_lshlrev_b32 v5, 4, v5\nv_and_b32 v7, 2, v0\nv_lshl_or_b32 v4, v7, 2, v5")
    a("v_lshl_add_u32 v7, v3, 5, v4\nv_mad_u32_u24 v7, v1, s75, v7")
    a("s_mul_i32 s61, s77, 3")
    for t in range(3):
        a(f"s_add_u32 s62, s61, {t}\nv_xor_b32 v5, s62, v2\nv_lshl_add_u32 v{23+t}, v5, 6, v7")
    a("v_and_b32 v5, 31, v0\nv_bfe_u32 v8, v0, 1, 3\nv_xor_b32 v8, v8, v6\nv_lshlrev_b32 v8, 4, v8\nv_lshl_add_u32 v8, v5, 7, v8")
    a("s_lshl_b32 s61, s76, 12\ns_add_u32 s61, s61, 24576\nv_add_u32 v29, s61, v8")
    for s in range(1, 4): a(f"v_xor_b32 v{29+s}, {s*32}, v29")
    a("s_movk_i32 s74, 320\nv_xor_b32 v5, s77, v3\nv_lshl_add_u32 v5, v5, 5, v4\nv_mad_u32_u24 v5, v1, s74, v5")
    a("s_mul_i32 s61, s77, 10240\nv_add_u32 v37, s61, v5\nv_add_u32 v38, 61440, v37\nv_add_u32 v39, 122880, v37")
    a("v_lshlrev_b32 v40, 4, v0")
    a("s_lshl_b32 s61, s3, 12\ns_add_u32 s61, s61, 24576\nv_add_u32 v41, s61, v40\ns_xor_b32 s62, s3, 2\ns_lshl_b32 s61, s62, 12\ns_add_u32 s61, s61, 24576\nv_add_u32 v42, s61, v40")
    a("s_mul_i32 s61, s3, 10240\ns_add_u32 s61, s61, 122880\nv_add_u32 v44, s61, v40\ns_mul_i32 s61, s62, 10240\ns_add_u32 s61, s61, 122880\nv_add_u32 v45, s61, v40")
    a("v_bfe_u32 v5, v0, 3, 2\nv_lshlrev_b32 v5, 8, v5\nv_lshl_add_u32 v5, v6, 7, v5\nv_and_b32 v7, 7, v0\nv_lshl_add_u32 v43, v7, 4, v5")
    a("s_mul_i32 s65, s23, 768\ns_mul_i32 s61, s77, 96\ns_add_u32 s65, s65, s61\ns_lshl_b32 s61, s76, 4\ns_add_u32 s65, s65, s61\ns_mul_i32 s65, s65, 1280\ns_mul_i32 s61, s22, 320\ns_add_u32 s65, s65, s61")
    for q in range(4):
        a(f"s_add_u32 s61, s22, {q}\ns_and_b32 s61, s61, 3\ns_mul_i32 s61, s61, 192*1280\ns_add_u32 s{66+q}, s61, s65")
    def issue_unit(u):
        pos = (u + 2) % 8
        a(f"s_add_u32 m0, s70, {pos*20480}\ns_add_u32 s61, s{66+u//3}, {(u%3)*32*1280}")
        for c in range(4):
            a.vmem(f"buffer_load_dwordx4 v{15+c}, s[40:43], s61 offen offset:{c*1024} lds", f"u{u}")
        a(f"s_add_u32 m0, s70, {pos*20480+4096}\ns_nop 0")
        a.vmem(f"buffer_load_dwordx4 v19, s[40:43], s61 offen lds", f"u{u}")
    for r in range(64, 112): a(f"v_mov_b32 v{r}, 0")
    for r in range(176, 256): a(f"v_mov_b32 v{r}, 0")
    a("v_mov_b32 v46, 0")
    AB = [136, 148]; BB = [160, 164]
    def p1_reads(s, st):
        b = st % 2
        a.ds(f"ds_read_b128 v[{BB[b]}:{BB[b]+3}], v{33+st}", f"p1_{s}_{st}_0")
        for t in range(3):
            for q in range(2):
                r = AB[b] + t * 4 + q * 2
                a.ds(f"ds_read_b64_tr_b16 v[{r}:{r+1}], v{26+t} offset:{(16*st+4*q)*384}", f"p1_{s}_{st}_{t}")
    for s in range(10):
        sb = slot_base(s)
        for t in range(3): a(f"v_add_u32 v{26+t}, {sb}, v{23+t}")
        for st in range(4): a(f"v_add_u32 v{33+st}, {sb}, v{29+st}")
        a.wait_vm(f"st{s}")
        a("s_barrier")
        if s == 0: stamp()
        p1_reads(s, 0); p1_reads(s, 1)
        if 1 <= s <= 6: issue_stage(s + 3)
        if s == 3: a.vmem("buffer_load_dwordx2 v[168:169], v46, s[48:51], 0 offen sc1", "nonce")
        if s == 7: issue_unit(0)
        if s == 8: issue_unit(1)
        if s == 9: issue_unit(2); issue_unit(3)
        for st in range(4):
            b = st % 2
            for t in range(3):
                a.wait_lg(f"p1_{s}_{st}_{t}")
                a(f"v_mfma_f32_32x32x16_bf16 v[{64+16*t}:{79+16*t}], v[{AB[b]+4*t}:{AB[b]+4*t+3}], v[{BB[b]}:{BB[b]+3}], v[{64+16*t}:{79+16*t}]")
            if st + 2 < 4: p1_reads(s, st + 2)
    stamp()
    a("s_mul_i32 s61, s76, 12288")
    for t in range(3): a(f"v_add_u32 v{26+t}, s61, v{23+t}")
    for t in range(3):
        for u in range(2):
            for q in range(2):
                r = 136 + (t * 2 + u) * 4 + q * 2
                a.ds(f"ds_read_b64_tr_b16 v[{r}:{r+1}], v{26+t} offset:{(16*u+4*q)*384}", "Vf")
    for t in range(3):
        if t == 2: a("s_nop 1")
        for k in range(8):
            a(f"v_cvt_pk_bf16_f32 v{112+t*8+k}, v{64+16*t+2*k}, v{65+16*t+2*k}")
    a("s_nop 1")
    for st in range(6):
        c = "0" if st == 0 else "v[48:63]"
        a(f"v_mfma_f32_32x32x16_bf16 v[48:63], a[{st*4}:{st*4+3}], v[{112+st*4}:{115+st*4}], {c}")
    a("s_nop 15")
    for q in range(4): a.ds(f"ds_write_b128 v41, v[{48+4*q}:{51+4*q}] offset:{q*1024}", "Sw")
    a("s_waitcnt lgkmcnt(0)\ns_barrier")
    for q in range(4): a.ds(f"ds_read_b128 v[{64+4*q}:{67+4*q}], v42 offset:{q*1024}", f"Sr")
    issue_unit(4); issue_unit(5)
    a("s_mov_b32 s74, 0x3dd53b95")
    a("s_waitcnt lgkmcnt(0)")
    for r in range(16): a(f"v_add_f32 v{48+r}, v{48+r}, v{64+r}")
    a("v_max3_f32 v1, v48, v49, v50\nv_max3_f32 v2, v51, v52, v53\nv_max3_f32 v3, v54, v55, v56\nv_max3_f32 v4, v57, v58, v59\nv_max3_f32 v5, v60, v61, v62")
    a("v_max3_f32 v1, v1, v2, v3\nv_max3_f32 v4, v4, v5, v63\nv_max_f32 v1, v1, v4\nv_mov_b32 v2, v1\ns_nop 1\nv_permlane32_swap_b32 v1, v2\ns_nop 1\nv_max_f32 v1, v1, v2\nv_mul_f32 v1, s74, v1")
    for r in range(16): a(f"v_fma_f32 v{48+r}, v{48+r}, s74, -v1")
    for r in range(16): a(f"v_exp_f32 v{48+r}, v{48+r}")
    a("s_nop 0")
    for r in range(8): a(f"v_add_f32 v{64+r}, v{48+2*r}, v{49+2*r}")
    for r in range(4): a(f"v_add_f32 v{64+r}, v{64+r}, v{68+r}")
    a("v_add_f32 v64, v64, v66\nv_add_f32 v65, v65, v67\nv_add_f32 v1, v64, v65\nv_mov_b32 v2, v1\ns_nop 1\nv_permlane32_swap_b32 v1, v2\ns_nop 1\nv_add_f32 v1, v1, v2\nv_rcp_f32 v1, v1\ns_nop 0")
    for r in range(16): a(f"v_mul_f32 v{48+r}, v{48+r}, v1")
    for k in range(8): a(f"v_cvt_pk_bf16_f32 v{160+k}, v{48+2*k}, v{49+2*k}")
    a("s_nop 1")
    for t in range(3):
        for u in range(2):
            c = "0" if u == 0 else f"v[{64+16*t}:{79+16*t}]"
            r = 136 + (t * 2 + u) * 4
            a(f"v_mfma_f32_32x32x16_bf16 v[{64+16*t}:{79+16*t}], v[{r}:{r+3}], v[{160+4*u}:{163+4*u}], {c}")
    a(f"s_mul_i32 s61, s2, 24576\ns_add_u32 s61, s61, s59\ns_add_u32 s61, s61, {OBUF}\ns_add_u32 s62, s61, 4096")
    a("s_nop 7")
    for t in range(3):
        if t == 2: a("s_nop 1")
        for k in range(8): a(f"v_cvt_pk_bf16_f32 v{112+t*8+k}, v{64+16*t+2*k}, v{65+16*t+2*k}")
        for u in range(2):
            f = t * 2 + u
            a.vmem(f"buffer_store_dwordx4 v[{112+f*4}:{115+f*4}], v40, s[52:55], {'s61' if f < 4 else 's62'} offen offset:{(f%4)*1024} sc1", "Ost")
    stamp()
    a.wait_vm("u3")
    a("s_barrier")
    FB = [48, 68]
    def p2_read(n, t):
        u, ks = n // 2, n % 2
        pos = (u + 2) % 8
        for q in range(2):
            r = FB[n % 2] + t * 4 + q * 2
            a.ds(f"ds_read_b64_tr_b16 v[{r}:{r+1}], v{37+pos//3} offset:{(pos%3)*20480+ks*5120+q*1280+t*64}", f"p2_{n}_{t}")
    def p2_step(n, prefetch):
        bsrc = f"v[{112+n*4}:{115+n*4}]" if n < 6 else f"a[{n*4}:{n*4+3}]"
        for t in range(5):
            a.wait_lg(f"p2_{n}_{t}")
            r = FB[n % 2] + t * 4
            a(f"v_mfma_f32_32x32x16_bf16 v[{176+16*t}:{191+16*t}], v[{r}:{r+3}], {bsrc}, v[{176+16*t}:{191+16*t}]")
            if prefetch is not None: p2_read(prefetch, t)
    for t in range(5): p2_read(0, t)
    issue_unit(6); issue_unit(7)
    for n in range(6): p2_step(n, n + 1)
    a("s_waitcnt lgkmcnt(4)")
    for t in range(5): p2_read(7, t)
    a.wait_vm("Ost")
    a("v_readfirstlane_b32 s72, v168\nv_readfirstlane_b32 s73, v169")
    a(f"s_mov_b32 s78, {spin_max}")
    a("L_nonce:\ns_cmp_lg_u32 s72, 0\ns_cbranch_scc1 L_nonce_ok")
    a("buffer_load_dwordx2 v[168:169], v46, s[48:51], 0 offen sc1\ns_waitcnt vmcnt(0)\nv_readfirstlane_b32 s72, v168\nv_readfirstlane_b32 s73, v169")
    a("s_sub_u32 s78, s78, 1\ns_cmp_lg_u32 s78, 0\ns_cbranch_scc1 L_nonce")
    a("L_nonce_ok:")
    a(f"s_lshl_b32 s61, s2, 2\ns_add_u32 s61, s61, s3\ns_lshl_b32 s71, s61, 7\ns_add_u32 s61, s71, {F1}")
    a("s_mov_b64 exec, 1")
    a.vmem("buffer_store_dwordx2 v[168:169], v46, s[52:55], s61 offen sc1", "flag1")
    a("s_mov_b64 exec, -1")
    stamp()
    a("s_waitcnt lgkmcnt(0)\ns_barrier")
    for u in range(8, 12): issue_unit(u)
    a("v_and_b32 v1, 3, v0\nv_lshlrev_b32 v1, 12, v1")
    a(f"s_and_b32 s61, s2, 0xe7\ns_lshl_b32 s62, s61, 2\ns_add_u32 s62, s62, s3\ns_lshl_b32 s62, s62, 7\ns_add_u32 s62, s62, {F1}")
    a(f"s_mul_i32 s61, s61, 24576\ns_add_u32 s61, s61, s59")
    for q in range(1, 4):
        a(f"s_add_u32 s63, s22, {q}\ns_and_b32 s63, s63, 3\ns_mul_i32 s63, s63, 8*24576\ns_add_u32 s{65+q}, s63, s61")
    a(f"s_mov_b32 s78, {spin_max}")
    a("L_poll1:\nbuffer_load_dwordx2 v[2:3], v1, s[52:55], s62 offen sc1\ns_waitcnt vmcnt(0)\nv_cmp_ne_u64 vcc, s[72:73], v[2:3]\ns_cbranch_vccz L_poll1_ok")
    a("s_sub_u32 s78, s78, 1\ns_cmp_lg_u32 s78, 0\ns_cbranch_scc1 L_poll1")
    a("L_poll1_ok:")
    a.vm = []
    for q in range(1, 4):
        a(f"s_add_u32 s63, s{65+q}, 4096")
        for f in range(6):
            n = q * 6 + f
            a.vmem(f"buffer_load_dwordx4 a[{n*4}:{n*4+3}], v40, s[52:55], {f's{65+q}' if f < 4 else 's63'} offen offset:{(f%4)*1024} sc1", f"O{n}")
    stamp()
    a("s_barrier")
    for n in range(6, 24):
        a.wait_vm(f"O{n}")
        if n == 12: a("s_barrier")
        p2_step(n, None if n in (6, 23) else n + 1)
    stamp()
    a(f"s_mul_i32 s61, s2, 20480\ns_add_u32 s61, s61, s70\ns_add_u32 s61, s61, {PBUF}\ns_add_u32 s62, s61, 4096")
    a("s_nop 7")
    for t in range(5):
        if t == 4: a("s_nop 3")
        for q in range(2):
            r = 176 + 16 * t + 8 + 4 * q
            a.ds(f"ds_write_b128 v44, v[{r}:{r+3}] offset:{(t*2+q)*1024}", "Kw")
    a("s_waitcnt lgkmcnt(0)\ns_barrier")
    for t in range(5):
        for q in range(2):
            r = 48 + t * 8 + 4 * q
            a.ds(f"ds_read_b128 v[{r}:{r+3}], v45 offset:{(t*2+q)*1024}", f"Kr{t}")
    for t in range(5):
        a.wait_lg(f"Kr{t}")
        for k in range(8): a(f"v_add_f32 v{48+t*8+k}, v{48+t*8+k}, v{176+16*t+k}")
        for k in range(4): a(f"v_cvt_pk_bf16_f32 v{112+t*4+k}, v{48+t*8+2*k}, v{49+t*8+2*k}")
        a.vmem(f"buffer_store_dwordx4 v[{112+t*4}:{115+t*4}], v43, s[52:55], {'s61' if t < 4 else 's62'} offen offset:{(t%4)*1024} sc1", "Pst")
    a("v_and_b32 v1, 7, v0\nv_lshlrev_b32 v1, 9, v1\nv_bfe_u32 v2, v0, 3, 1\nv_lshl_add_u32 v1, v2, 8, v1")
    a(f"s_and_b32 s63, s2, 0xf8\ns_lshr_b32 s64, s23, 2\ns_lshl_b32 s62, s63, 2\ns_add_u32 s62, s62, s64\ns_lshl_b32 s62, s62, 7\ns_add_u32 s62, s62, {F2}")
    a(f"s_mul_i32 s63, s63, 20480\ns_mul_i32 s64, s64, 5120\ns_add_u32 s63, s63, s64\ns_and_b32 s64, s23, 3\ns_lshl_b32 s64, s64, 8\ns_add_u32 s63, s63, s64\ns_add_u32 s63, s63, {PBUF}")
    a("v_lshrrev_b32 v4, 4, v47\nv_cmp_le_u32 vcc, 5, v4\ns_nop 1\nv_cndmask_b32 v5, 0, 1, vcc")
    a("v_mul_u32_u24 v6, 5, v5\nv_sub_u32 v6, v4, v6")
    a("v_mul_u32_u24 v7, 10240, v5\nv_lshl_add_u32 v7, v6, 10, v7\nv_and_b32 v8, 15, v0\nv_lshl_add_u32 v7, v8, 4, v7")
    a("v_lshlrev_b32 v6, 6, v6\nv_lshl_add_u32 v6, v5, 5, v6\nv_lshl_add_u32 v6, v2, 4, v6\nv_and_b32 v8, 7, v0\nv_mul_u32_u24 v8, 1280, v8\nv_add_u32 v6, v6, v8")
    a("s_lshl_b32 s64, s21, 6\ns_lshl_b32 s65, s23, 3\ns_add_u32 s64, s64, s65\ns_mul_i32 s64, s64, 1280\ns_mul_i32 s65, s22, 320\ns_add_u32 s64, s64, s65")
    a(f"s_add_u32 s61, s71, {F2}")
    a("s_waitcnt vmcnt(0)\ns_mov_b64 exec, 1\nbuffer_store_dwordx2 v[168:169], v46, s[52:55], s61 offen sc1\ns_mov_b64 exec, -1")
    stamp()
    a("s_cmp_eq_u32 s3, 3\ns_cbranch_scc1 L_end")
    a(f"s_mov_b32 s78, {spin_max}")
    a("L_poll2:\nbuffer_load_dwordx2 v[2:3], v1, s[52:55], s62 offen sc1\ns_waitcnt vmcnt(0)\nv_cmp_ne_u64 vcc, s[72:73], v[2:3]\ns_cbranch_vccz L_poll2_ok")
    a("s_sub_u32 s78, s78, 1\ns_cmp_lg_u32 s78, 0\ns_cbranch_scc1 L_poll2")
    a("L_poll2_ok:")
    stamp()
    a("v_cmp_gt_u32 vcc, 160, v47\ns_and_b64 exec, exec, vcc")
    a.vm = []
    for js in range(8):
        a.vmem(f"buffer_load_dwordx4 v[{48+js*4}:{51+js*4}], v7, s[52:55], s63 offen sc1", f"P{js}")
        if js < 7: a("s_add_u32 s63, s63, 20480")
    for js in range(8):
        a.wait_vm(f"P{js}")
        for k in range(4):
            if js == 0:
                a(f"v_lshlrev_b32 v{80+2*k}, 16, v{48+k}\nv_and_b32 v{81+2*k}, 0xffff0000, v{48+k}")
            else:
                r = 48 + js * 4 + k
                a(f"v_lshlrev_b32 v90, 16, v{r}\nv_and_b32 v91, 0xffff0000, v{r}\nv_add_f32 v{80+2*k}, v{80+2*k}, v90\nv_add_f32 v{81+2*k}, v{81+2*k}, v91")
    for k in range(4): a(f"v_cvt_pk_bf16_f32 v{92+k}, v{80+2*k}, v{81+2*k}")
    a("buffer_store_dwordx4 v[92:95], v6, s[44:47], s64 offen")
    if stamps:
        a("s_waitcnt vmcnt(0)")
        stamp()
        n = nst[0]
        a("s_waitcnt lgkmcnt(0)\ns_cmp_lg_u32 s3, 0\ns_cbranch_scc1 L_end")
        a(f"s_mul_i32 s20, s2, {n*8}\ns_add_u32 s20, s20, {STAMP_OFF}\ns_add_u32 s18, s18, s20\ns_addc_u32 s19, s19, 0\nv_mov_b32 v1, 0\ns_mov_b64 exec, 1")
        for k in range(n):
            a(f"v_mov_b32 v2, s{80+2*k}\nv_mov_b32 v3, s{81+2*k}\nglobal_store_dwordx2 v1, v[2:3], s[18:19] offset:{k*8}\ns_nop 1")
        print("stamps:", n)
    a("L_end:\ns_endpgm")
    return whole_file(["; @launch grid=(256,1,1) block=(256,1,1) lds=163840"], [(KNAME, a.text(), 256 + 96, 102, 256)])

if __name__ == "__main__":
    open("k1.s", "w").write(gen())
    open("k1s.s", "w").write(gen(stamps=True))
```

```python
import sys
from asmlib import *

OBUF = 0
F1 = 8 << 20
F2 = 9 << 20
PBUF = 16 << 20
WS_REC = 32 << 20
STAMP_OFF = 200 << 20

class G(Asm):
    def __init__(self):
        super().__init__()
        self.vm = []
        self.lg = []
    def vmem(self, s, tag):
        self(s); self.vm.append(tag)
    def ds(self, s, tag):
        self(s); self.lg.append(tag)
    def _cnt(self, q, tag):
        idx = max(i for i, t in enumerate(q) if t == tag)
        return len(q) - 1 - idx
    def wait_vm(self, tag):
        n = self._cnt(self.vm, tag)
        assert n <= 63, n
        self(f"s_waitcnt vmcnt({n})")
    def wait_lg(self, tag):
        n = min(self._cnt(self.lg, tag), 15)
        self(f"s_waitcnt lgkmcnt({n})")

def gen(stamps=False, rot=True, spin_max=1 << 20, nt=''):
    a = G()
    nst = [0]
    NT = {k: (' nt' if k in nt else '') for k in 'qxkvo'}
    def stamp():
        if stamps:
            a(f"s_memrealtime s[{80+2*nst[0]}:{81+2*nst[0]}]"); nst[0] += 1
    a("s_cmp_ge_u32 s2, 256\ns_cbranch_scc1 L_end")
    a("s_load_dwordx16 s[4:19], s[0:1], 0")
    stamp()
    a("s_memrealtime s[72:73]")
    a("v_lshrrev_b32 v1, 6, v0\nv_mov_b32 v47, v0\nv_and_b32 v0, 63, v0\nv_readfirstlane_b32 s3, v1")
    a("s_and_b32 s23, s2, 7\ns_lshr_b32 s22, s2, 3\ns_and_b32 s22, s22, 3\ns_lshr_b32 s21, s2, 5\ns_lshl_b32 s20, s23, 2\ns_add_u32 s20, s20, s22")
    a("s_movk_i32 s74, 0x3000\ns_movk_i32 s75, 0x180")
    for t in range(3):
        a(f"v_add_u32 v5, {t*64}, v0")
        a("v_mul_u32_u24 v6, 0xAAAB, v5\nv_lshrrev_b32 v6, 20, v6")
        a("v_mul_u32_u24 v7, 24, v6\nv_sub_u32 v7, v5, v7")
        a("v_and_b32 v8, 2, v6\nv_lshlrev_b32 v8, 1, v8\nv_xor_b32 v7, v7, v8\nv_lshlrev_b32 v7, 4, v7")
        if t: a(f"v_subrev_u32 v7, {t*1024}, v7")
        a(f"v_mad_u32_u24 v{10+t}, v6, s74, v7\nv_mad_u32_u24 v{20+t}, v6, s75, v7")
    a("s_movk_i32 s74, 1280")
    a("v_lshrrev_b32 v5, 3, v0\nv_and_b32 v6, 7, v0\nv_lshrrev_b32 v7, 4, v0\nv_xor_b32 v6, v6, v7\nv_lshlrev_b32 v6, 4, v6")
    a("v_mad_u32_u24 v13, v5, s74, v6\nv_xor_b32 v6, 64, v6\nv_mad_u32_u24 v14, v5, s74, v6")
    a(f"v_add_u32 v14, {8*1280-1024}, v14")
    if rot: a("s_mul_i32 s56, s21, 10\ns_lshr_b32 s56, s56, 3")
    else: a("s_mov_b32 s56, 0")
    a("s_mul_i32 s57, s3, 16*12288\ns_mul_i32 s74, s20, 384\ns_add_u32 s57, s57, s74")
    a("s_lshl_b32 s58, s21, 6\ns_lshl_b32 s74, s3, 4\ns_add_u32 s58, s58, s74\ns_mul_i32 s58, s58, 1280")
    a("s_mul_i32 s59, s3, 6144\ns_lshl_b32 s60, s3, 11\ns_add_u32 s60, s60, 24576\ns_mul_i32 s70, s3, 5120")
    a("s_and_b32 s76, s3, 1\ns_lshr_b32 s77, s3, 1")
    for d in (27, 31, 35, 39, 43, 47, 51, 55): a(f"s_mov_b32 s{d}, 0x20000")
    for d, n in ((26, 655360), (30, 6291456), (34, 6291456), (38, 7864320), (42, 7864320), (46, 655360), (50, 256), (54, WS_REC)):
        a(f"s_mov_b32 s{d}, {n}")
    a("s_waitcnt lgkmcnt(0)")
    for d, p in ((36, 10), (24, 4), (28, 6), (32, 8), (40, 12), (44, 14), (48, 16), (52, 18)):
        a(f"s_mov_b64 s[{d}:{d+1}], s[{p}:{p+1}]")
    def slot_base(s): return 32768 + ((s + 2) % 4) * 32768
    def issue_stage(s):
        sb = slot_base(s)
        a("s_mul_i32 s61, s56, 64*12288\ns_add_u32 s61, s61, s57\ns_add_u32 s62, s61, 8*12288")
        a(f"s_add_u32 m0, s59, {sb}")
        a("s_lshl_b32 s63, s56, 7\ns_add_u32 s63, s63, s58")
        for t in range(3):
            a.vmem(f"buffer_load_dwordx4 v{10+t}, s[36:39], s61 offen offset:{t*1024}{NT['q']} lds", f"st{s}")
        a(f"s_add_u32 m0, s59, {sb+3072}")
        a("s_add_u32 s56, s56, 1")
        for t in range(3):
            a.vmem(f"buffer_load_dwordx4 v{10+t}, s[36:39], s62 offen offset:{t*1024}{NT['q']} lds", f"st{s}")
        a(f"s_add_u32 m0, s60, {sb}")
        a("s_cmp_eq_u32 s56, 10\ns_cselect_b32 s56, 0, s56")
        for p in range(2):
            a.vmem(f"buffer_load_dwordx4 v{13+p}, s[24:27], s63 offen offset:{p*1024}{NT['x']} lds", f"st{s}")
    issue_stage(0)
    a("s_or_b32 s74, s2, s3\ns_cmp_lg_u32 s74, 0\ns_cbranch_scc1 L_notleader")
    a("s_or_b32 s72, s72, 1\nv_mov_b32 v2, s72\nv_mov_b32 v3, s73\nv_mov_b32 v1, 0\ns_mov_b64 exec, 1\nbuffer_store_dwordx2 v[2:3], v1, s[48:51], 0 offen sc1\ns_mov_b64 exec, -1")
    a("L_notleader:")
    for s in range(1, 4): issue_stage(s)
    a("v_and_b32 v5, 0x13, v0\nv_and_b32 v6, 4, v0\nv_lshl_or_b32 v5, v6, 1, v5\nv_and_b32 v6, 8, v0\nv_lshrrev_b32 v6, 1, v6\nv_or_b32 v5, v5, v6")
    a("v_lshrrev_b32 v6, 5, v0\nv_lshlrev_b32 v6, 4, v6\nv_mad_u32_u24 v5, v5, s75, v6")
    a("s_lshl_b32 s61, s21, 1\ns_add_u32 s62, s61, s76\ns_lshl_b32 s62, s62, 5\ns_add_u32 s62, s62, s20\ns_mul_i32 s62, s62, 12288\ns_mul_i32 s63, s77, 192\ns_add_u32 s62, s62, s63")
    for st in range(6):
        a.vmem(f"buffer_load_dwordx4 a[{st*4}:{st*4+3}], v5, s[28:31], s62 offen offset:{st*32}{NT['k']}", "K")
    a("s_add_u32 s62, s61, s77\ns_lshl_b32 s62, s62, 5\ns_add_u32 s62, s62, s20\ns_mul_i32 s62, s62, 12288\ns_mul_i32 s63, s76, 6144\ns_add_u32 s62, s62, s63\ns_add_u32 s63, s62, 3072")
    a("s_mov_b32 m0, s59\ns_nop 0")
    for t in range(3): a.vmem(f"buffer_load_dwordx4 v{20+t}, s[32:35], s62 offen offset:{t*1024}{NT['v']} lds", "V")
    a("s_add_u32 m0, s59, 3072\ns_nop 0")
    for t in range(3): a.vmem(f"buffer_load_dwordx4 v{20+t}, s[32:35], s63 offen offset:{t*1024}{NT['v']} lds", "V")
    a("s_movk_i32 s74, 1280")
    for c in range(5):
        a(f"v_add_u32 v5, {c*64}, v0")
        a("v_mul_u32_u24 v6, 0xCCCD, v5\nv_lshrrev_b32 v6, 20, v6\nv_mul_u32_u24 v7, 20, v6\nv_sub_u32 v7, v5, v7\nv_lshlrev_b32 v7, 4, v7")
        if c % 4: a(f"v_subrev_u32 v7, {(c%4)*1024}, v7")
        a(f"v_mad_u32_u24 v{15+c}, v6, s74, v7")
    a("v_bfe_u32 v5, v0, 2, 2\nv_lshrrev_b32 v6, 5, v0\nv_lshl_add_u32 v1, v6, 3, v5\nv_lshrrev_b32 v2, 1, v5\nv_bfe_u32 v3, v0, 4, 1")
    a("v_and_b32 v5, 1, v0\nv_lshlrev_b32 v5, 4, v5\nv_and_b32 v7, 2, v0\nv_lshl_or_b32 v4, v7, 2, v5")
    a("v_lshl_add_u32 v7, v3, 5, v4\nv_mad_u32_u24 v7, v1, s75, v7")
    a("s_mul_i32 s61, s77, 3")
    for t in range(3):
        a(f"s_add_u32 s62, s61, {t}\nv_xor_b32 v5, s62, v2\nv_lshl_add_u32 v{23+t}, v5, 6, v7")
    a("v_and_b32 v5, 31, v0\nv_bfe_u32 v8, v0, 1, 3\nv_xor_b32 v8, v8, v6\nv_lshlrev_b32 v8, 4, v8\nv_lshl_add_u32 v8, v5, 7, v8")
    a("s_lshl_b32 s61, s76, 12\ns_add_u32 s61, s61, 24576\nv_add_u32 v29, s61, v8")
    for s in range(1, 4): a(f"v_xor_b32 v{29+s}, {s*32}, v29")
    a("s_movk_i32 s74, 320\nv_xor_b32 v5, s77, v3\nv_lshl_add_u32 v5, v5, 5, v4\nv_mad_u32_u24 v5, v1, s74, v5")
    a("s_mul_i32 s61, s77, 10240\nv_add_u32 v37, s61, v5\nv_add_u32 v38, 61440, v37\nv_add_u32 v39, 122880, v37")
    a("v_lshlrev_b32 v40, 4, v0")
    a("s_lshl_b32 s61, s3, 12\ns_add_u32 s61, s61, 24576\nv_add_u32 v41, s61, v40\ns_xor_b32 s62, s3, 2\ns_lshl_b32 s61, s62, 12\ns_add_u32 s61, s61, 24576\nv_add_u32 v42, s61, v40")
    a("s_mul_i32 s61, s3, 10240\ns_add_u32 s61, s61, 122880\nv_add_u32 v44, s61, v40\ns_mul_i32 s61, s62, 10240\ns_add_u32 s61, s61, 122880\nv_add_u32 v45, s61, v40")
    a("v_bfe_u32 v5, v0, 3, 2\nv_lshlrev_b32 v5, 8, v5\nv_lshl_add_u32 v5, v6, 7, v5\nv_and_b32 v7, 7, v0\nv_lshl_add_u32 v43, v7, 4, v5")
    a("s_mul_i32 s65, s23, 768\ns_mul_i32 s61, s77, 96\ns_add_u32 s65, s65, s61\ns_lshl_b32 s61, s76, 4\ns_add_u32 s65, s65, s61\ns_mul_i32 s65, s65, 1280\ns_mul_i32 s61, s22, 320\ns_add_u32 s65, s65, s61")
    for q in range(4):
        a(f"s_add_u32 s61, s22, {q}\ns_and_b32 s61, s61, 3\ns_mul_i32 s61, s61, 192*1280\ns_add_u32 s{66+q}, s61, s65")
    def issue_unit(u):
        pos = (u + 2) % 8
        a(f"s_add_u32 m0, s70, {pos*20480}\ns_add_u32 s61, s{66+u//3}, {(u%3)*32*1280}")
        for c in range(4):
            a.vmem(f"buffer_load_dwordx4 v{15+c}, s[40:43], s61 offen offset:{c*1024}{NT['o']} lds", f"u{u}")
        a(f"s_add_u32 m0, s70, {pos*20480+4096}\ns_nop 0")
        a.vmem(f"buffer_load_dwordx4 v19, s[40:43], s61 offen{NT['o']} lds", f"u{u}")
    for r in range(64, 112): a(f"v_mov_b32 v{r}, 0")
    for r in range(176, 256): a(f"v_mov_b32 v{r}, 0")
    a("v_mov_b32 v46, 0")
    AB = [136, 148]; BB = [160, 164]
    def p1_reads(s, st):
        b = st % 2
        a.ds(f"ds_read_b128 v[{BB[b]}:{BB[b]+3}], v{33+st}", f"p1_{s}_{st}_0")
        for t in range(3):
            for q in range(2):
                r = AB[b] + t * 4 + q * 2
                a.ds(f"ds_read_b64_tr_b16 v[{r}:{r+1}], v{26+t} offset:{(16*st+4*q)*384}", f"p1_{s}_{st}_{t}")
    for s in range(10):
        sb = slot_base(s)
        for t in range(3): a(f"v_add_u32 v{26+t}, {sb}, v{23+t}")
        for st in range(4): a(f"v_add_u32 v{33+st}, {sb}, v{29+st}")
        a.wait_vm(f"st{s}")
        a("s_barrier")
        if s == 0: stamp()
        p1_reads(s, 0); p1_reads(s, 1)
        if 1 <= s <= 6: issue_stage(s + 3)
        if s == 3: a.vmem("buffer_load_dwordx2 v[168:169], v46, s[48:51], 0 offen sc1", "nonce")
        if s == 7: issue_unit(0)
        if s == 8: issue_unit(1)
        if s == 9: issue_unit(2); issue_unit(3)
        for st in range(4):
            b = st % 2
            for t in range(3):
                a.wait_lg(f"p1_{s}_{st}_{t}")
                a(f"v_mfma_f32_32x32x16_bf16 v[{64+16*t}:{79+16*t}], v[{AB[b]+4*t}:{AB[b]+4*t+3}], v[{BB[b]}:{BB[b]+3}], v[{64+16*t}:{79+16*t}]")
            if st + 2 < 4: p1_reads(s, st + 2)
    stamp()
    a("s_mul_i32 s61, s76, 12288")
    for t in range(3): a(f"v_add_u32 v{26+t}, s61, v{23+t}")
    for t in range(3):
        for u in range(2):
            for q in range(2):
                r = 136 + (t * 2 + u) * 4 + q * 2
                a.ds(f"ds_read_b64_tr_b16 v[{r}:{r+1}], v{26+t} offset:{(16*u+4*q)*384}", "Vf")
    for t in range(3):
        if t == 2: a("s_nop 1")
        for k in range(8):
            a(f"v_cvt_pk_bf16_f32 v{112+t*8+k}, v{64+16*t+2*k}, v{65+16*t+2*k}")
    a("s_nop 1")
    for st in range(6):
        c = "0" if st == 0 else "v[48:63]"
        a(f"v_mfma_f32_32x32x16_bf16 v[48:63], a[{st*4}:{st*4+3}], v[{112+st*4}:{115+st*4}], {c}")
    a("s_nop 15")
    for q in range(4): a.ds(f"ds_write_b128 v41, v[{48+4*q}:{51+4*q}] offset:{q*1024}", "Sw")
    a("s_waitcnt lgkmcnt(0)\ns_barrier")
    for q in range(4): a.ds(f"ds_read_b128 v[{64+4*q}:{67+4*q}], v42 offset:{q*1024}", f"Sr")
    issue_unit(4); issue_unit(5)
    a("s_mov_b32 s74, 0x3dd53b95")
    a("s_waitcnt lgkmcnt(0)")
    for r in range(16): a(f"v_add_f32 v{48+r}, v{48+r}, v{64+r}")
    a("v_max3_f32 v1, v48, v49, v50\nv_max3_f32 v2, v51, v52, v53\nv_max3_f32 v3, v54, v55, v56\nv_max3_f32 v4, v57, v58, v59\nv_max3_f32 v5, v60, v61, v62")
    a("v_max3_f32 v1, v1, v2, v3\nv_max3_f32 v4, v4, v5, v63\nv_max_f32 v1, v1, v4\nv_mov_b32 v2, v1\ns_nop 1\nv_permlane32_swap_b32 v1, v2\ns_nop 1\nv_max_f32 v1, v1, v2\nv_mul_f32 v1, s74, v1")
    for r in range(16): a(f"v_fma_f32 v{48+r}, v{48+r}, s74, -v1")
    for r in range(16): a(f"v_exp_f32 v{48+r}, v{48+r}")
    a("s_nop 0")
    for r in range(8): a(f"v_add_f32 v{64+r}, v{48+2*r}, v{49+2*r}")
    for r in range(4): a(f"v_add_f32 v{64+r}, v{64+r}, v{68+r}")
    a("v_add_f32 v64, v64, v66\nv_add_f32 v65, v65, v67\nv_add_f32 v1, v64, v65\nv_mov_b32 v2, v1\ns_nop 1\nv_permlane32_swap_b32 v1, v2\ns_nop 1\nv_add_f32 v1, v1, v2\nv_rcp_f32 v1, v1\ns_nop 0")
    for r in range(16): a(f"v_mul_f32 v{48+r}, v{48+r}, v1")
    for k in range(8): a(f"v_cvt_pk_bf16_f32 v{160+k}, v{48+2*k}, v{49+2*k}")
    a("s_nop 1")
    for t in range(3):
        for u in range(2):
            c = "0" if u == 0 else f"v[{64+16*t}:{79+16*t}]"
            r = 136 + (t * 2 + u) * 4
            a(f"v_mfma_f32_32x32x16_bf16 v[{64+16*t}:{79+16*t}], v[{r}:{r+3}], v[{160+4*u}:{163+4*u}], {c}")
    a(f"s_mul_i32 s61, s2, 24576\ns_add_u32 s61, s61, s59\ns_add_u32 s61, s61, {OBUF}\ns_add_u32 s62, s61, 4096")
    a("s_nop 7")
    for t in range(3):
        if t == 2: a("s_nop 1")
        for k in range(8): a(f"v_cvt_pk_bf16_f32 v{112+t*8+k}, v{64+16*t+2*k}, v{65+16*t+2*k}")
        for u in range(2):
            f = t * 2 + u
            a.vmem(f"buffer_store_dwordx4 v[{112+f*4}:{115+f*4}], v40, s[52:55], {'s61' if f < 4 else 's62'} offen offset:{(f%4)*1024} sc1", "Ost")
    stamp()
    a.wait_vm("u3")
    a("s_barrier")
    FB = [48, 68]
    def p2_read(n, t):
        u, ks = n // 2, n % 2
        pos = (u + 2) % 8
        for q in range(2):
            r = FB[n % 2] + t * 4 + q * 2
            a.ds(f"ds_read_b64_tr_b16 v[{r}:{r+1}], v{37+pos//3} offset:{(pos%3)*20480+ks*5120+q*1280+t*64}", f"p2_{n}_{t}")
    def p2_step(n, prefetch):
        bsrc = f"v[{112+n*4}:{115+n*4}]" if n < 6 else f"a[{n*4}:{n*4+3}]"
        for t in range(5):
            a.wait_lg(f"p2_{n}_{t}")
            r = FB[n % 2] + t * 4
            a(f"v_mfma_f32_32x32x16_bf16 v[{176+16*t}:{191+16*t}], v[{r}:{r+3}], {bsrc}, v[{176+16*t}:{191+16*t}]")
            if prefetch is not None: p2_read(prefetch, t)
    for t in range(5): p2_read(0, t)
    issue_unit(6); issue_unit(7)
    for n in range(6): p2_step(n, n + 1)
    a("s_waitcnt lgkmcnt(4)")
    for t in range(5): p2_read(7, t)
    a.wait_vm("Ost")
    a("v_readfirstlane_b32 s72, v168\nv_readfirstlane_b32 s73, v169")
    a(f"s_mov_b32 s78, {spin_max}")
    a("L_nonce:\ns_cmp_lg_u32 s72, 0\ns_cbranch_scc1 L_nonce_ok")
    a("buffer_load_dwordx2 v[168:169], v46, s[48:51], 0 offen sc1\ns_waitcnt vmcnt(0)\nv_readfirstlane_b32 s72, v168\nv_readfirstlane_b32 s73, v169")
    a("s_sub_u32 s78, s78, 1\ns_cmp_lg_u32 s78, 0\ns_cbranch_scc1 L_nonce")
    a("L_nonce_ok:")
    a(f"s_lshl_b32 s61, s2, 2\ns_add_u32 s61, s61, s3\ns_lshl_b32 s71, s61, 7\ns_add_u32 s61, s71, {F1}")
    a("s_mov_b64 exec, 1")
    a.vmem("buffer_store_dwordx2 v[168:169], v46, s[52:55], s61 offen sc1", "flag1")
    a("s_mov_b64 exec, -1")
    stamp()
    a("s_waitcnt lgkmcnt(0)\ns_barrier")
    for u in range(8, 12): issue_unit(u)
    a("v_and_b32 v1, 3, v0\nv_lshlrev_b32 v1, 12, v1")
    a(f"s_and_b32 s61, s2, 0xe7\ns_lshl_b32 s62, s61, 2\ns_add_u32 s62, s62, s3\ns_lshl_b32 s62, s62, 7\ns_add_u32 s62, s62, {F1}")
    a(f"s_mul_i32 s61, s61, 24576\ns_add_u32 s61, s61, s59")
    for q in range(1, 4):
        a(f"s_add_u32 s63, s22, {q}\ns_and_b32 s63, s63, 3\ns_mul_i32 s63, s63, 8*24576\ns_add_u32 s{65+q}, s63, s61")
    a(f"s_mov_b32 s78, {spin_max}")
    a("L_poll1:\nbuffer_load_dwordx2 v[2:3], v1, s[52:55], s62 offen sc1\ns_waitcnt vmcnt(0)\nv_cmp_ne_u64 vcc, s[72:73], v[2:3]\ns_cbranch_vccz L_poll1_ok")
    a("s_sub_u32 s78, s78, 1\ns_cmp_lg_u32 s78, 0\ns_cbranch_scc1 L_poll1")
    a("L_poll1_ok:")
    a.vm = []
    for q in range(1, 4):
        a(f"s_add_u32 s63, s{65+q}, 4096")
        for f in range(6):
            n = q * 6 + f
            a.vmem(f"buffer_load_dwordx4 a[{n*4}:{n*4+3}], v40, s[52:55], {f's{65+q}' if f < 4 else 's63'} offen offset:{(f%4)*1024} sc1", f"O{n}")
    stamp()
    a("s_barrier")
    for n in range(6, 24):
        a.wait_vm(f"O{n}")
        if n == 12: a("s_barrier")
        p2_step(n, None if n in (6, 23) else n + 1)
    stamp()
    a(f"s_mul_i32 s61, s2, 20480\ns_add_u32 s61, s61, s70\ns_add_u32 s61, s61, {PBUF}\ns_add_u32 s62, s61, 4096")
    a("s_nop 7")
    for t in range(5):
        if t == 4: a("s_nop 3")
        for q in range(2):
            r = 176 + 16 * t + 8 + 4 * q
            a.ds(f"ds_write_b128 v44, v[{r}:{r+3}] offset:{(t*2+q)*1024}", "Kw")
    a("s_waitcnt lgkmcnt(0)\ns_barrier")
    for t in range(5):
        for q in range(2):
            r = 48 + t * 8 + 4 * q
            a.ds(f"ds_read_b128 v[{r}:{r+3}], v45 offset:{(t*2+q)*1024}", f"Kr{t}")
    for t in range(5):
        a.wait_lg(f"Kr{t}")
        for k in range(8): a(f"v_add_f32 v{48+t*8+k}, v{48+t*8+k}, v{176+16*t+k}")
        for k in range(4): a(f"v_cvt_pk_bf16_f32 v{112+t*4+k}, v{48+t*8+2*k}, v{49+t*8+2*k}")
        a.vmem(f"buffer_store_dwordx4 v[{112+t*4}:{115+t*4}], v43, s[52:55], {'s61' if t < 4 else 's62'} offen offset:{(t%4)*1024} sc1", "Pst")
    a("v_and_b32 v1, 7, v0\nv_lshlrev_b32 v1, 9, v1\nv_bfe_u32 v2, v0, 3, 1\nv_lshl_add_u32 v1, v2, 8, v1")
    a(f"s_and_b32 s63, s2, 0xf8\ns_lshr_b32 s64, s23, 2\ns_lshl_b32 s62, s63, 2\ns_add_u32 s62, s62, s64\ns_lshl_b32 s62, s62, 7\ns_add_u32 s62, s62, {F2}")
    a(f"s_mul_i32 s63, s63, 20480\ns_mul_i32 s64, s64, 5120\ns_add_u32 s63, s63, s64\ns_and_b32 s64, s23, 3\ns_lshl_b32 s64, s64, 8\ns_add_u32 s63, s63, s64\ns_add_u32 s63, s63, {PBUF}")
    a("v_lshrrev_b32 v4, 4, v47\nv_cmp_le_u32 vcc, 5, v4\ns_nop 1\nv_cndmask_b32 v5, 0, 1, vcc")
    a("v_mul_u32_u24 v6, 5, v5\nv_sub_u32 v6, v4, v6")
    a("v_mul_u32_u24 v7, 10240, v5\nv_lshl_add_u32 v7, v6, 10, v7\nv_and_b32 v8, 15, v0\nv_lshl_add_u32 v7, v8, 4, v7")
    a("v_lshlrev_b32 v6, 6, v6\nv_lshl_add_u32 v6, v5, 5, v6\nv_lshl_add_u32 v6, v2, 4, v6\nv_and_b32 v8, 7, v0\nv_mul_u32_u24 v8, 1280, v8\nv_add_u32 v6, v6, v8")
    a("s_lshl_b32 s64, s21, 6\ns_lshl_b32 s65, s23, 3\ns_add_u32 s64, s64, s65\ns_mul_i32 s64, s64, 1280\ns_mul_i32 s65, s22, 320\ns_add_u32 s64, s64, s65")
    a(f"s_add_u32 s61, s71, {F2}")
    a("s_waitcnt vmcnt(0)\ns_mov_b64 exec, 1\nbuffer_store_dwordx2 v[168:169], v46, s[52:55], s61 offen sc1\ns_mov_b64 exec, -1")
    stamp()
    a("s_cmp_eq_u32 s3, 3\ns_cbranch_scc1 L_end")
    a(f"s_mov_b32 s78, {spin_max}")
    a("L_poll2:\nbuffer_load_dwordx2 v[2:3], v1, s[52:55], s62 offen sc1\ns_waitcnt vmcnt(0)\nv_cmp_ne_u64 vcc, s[72:73], v[2:3]\ns_cbranch_vccz L_poll2_ok")
    a("s_sub_u32 s78, s78, 1\ns_cmp_lg_u32 s78, 0\ns_cbranch_scc1 L_poll2")
    a("L_poll2_ok:")
    stamp()
    a("v_cmp_gt_u32 vcc, 160, v47\ns_and_b64 exec, exec, vcc")
    a.vm = []
    for js in range(8):
        a.vmem(f"buffer_load_dwordx4 v[{48+js*4}:{51+js*4}], v7, s[52:55], s63 offen sc1", f"P{js}")
        if js < 7: a("s_add_u32 s63, s63, 20480")
    for js in range(8):
        a.wait_vm(f"P{js}")
        for k in range(4):
            if js == 0:
                a(f"v_lshlrev_b32 v{80+2*k}, 16, v{48+k}\nv_and_b32 v{81+2*k}, 0xffff0000, v{48+k}")
            else:
                r = 48 + js * 4 + k
                a(f"v_lshlrev_b32 v90, 16, v{r}\nv_and_b32 v91, 0xffff0000, v{r}\nv_add_f32 v{80+2*k}, v{80+2*k}, v90\nv_add_f32 v{81+2*k}, v{81+2*k}, v91")
    for k in range(4): a(f"v_cvt_pk_bf16_f32 v{92+k}, v{80+2*k}, v{81+2*k}")
    a("buffer_store_dwordx4 v[92:95], v6, s[44:47], s64 offen")
    if stamps:
        a("s_waitcnt vmcnt(0)")
        stamp()
        n = nst[0]
        a("s_waitcnt lgkmcnt(0)\ns_cmp_lg_u32 s3, 0\ns_cbranch_scc1 L_end")
        a(f"s_mul_i32 s20, s2, {n*8}\ns_add_u32 s20, s20, {STAMP_OFF}\ns_add_u32 s18, s18, s20\ns_addc_u32 s19, s19, 0\nv_mov_b32 v1, 0\ns_mov_b64 exec, 1")
        for k in range(n):
            a(f"v_mov_b32 v2, s{80+2*k}\nv_mov_b32 v3, s{81+2*k}\nglobal_store_dwordx2 v1, v[2:3], s[18:19] offset:{k*8}\ns_nop 1")
        print("stamps:", n)
    a("L_end:\ns_endpgm")
    return whole_file(["; @launch grid=(256,1,1) block=(256,1,1) lds=163840"], [(KNAME, a.text(), 256 + 96, 102, 256)])

if __name__ == "__main__":
    open("k1.s", "w").write(gen())
    open("k1s.s", "w").write(gen(stamps=True))
    for nm in ("qxkvo", "qkvo", "kv", "v", "qo"):
        open(f"k1_{nm}.s", "w").write(gen(nt=nm))
        open(f"k1s_{nm}.s", "w").write(gen(stamps=True, nt=nm))
```
